```python
import torch

def _softmax(x, axis=-1):
    return torch.softmax(x, dim=axis)
def _gelu(x):
    return torch.nn.functional.gelu(x, approximate="tanh")
def _silu(x):
    return torch.nn.functional.silu(x)
def _sigmoid(x):
    return torch.sigmoid(x)
def _layernorm(x, axis=-1, eps=1e-5):
    m = x.mean(dim=axis, keepdim=True)
    v = x.var(dim=axis, keepdim=True, unbiased=False)
    return (x - m) / torch.sqrt(v + eps)
def _scatter_add(tgt, idx, src, axis=0):
    return tgt.clone().index_add_(axis, idx, src)
def _segment_sum(src, seg, n):
    out = torch.zeros((n,) + src.shape[1:], dtype=src.dtype)
    return out.index_add_(0, seg, src)
def _pad(x, pw):
    flat = tuple(v for pair in reversed(pw) for v in pair)
    return torch.nn.functional.pad(x, flat)

kernel_name = 'gated_mix__spectral_fnet__glu_gated_glu__prompt'

def setup_inputs():

    _w = (lambda a: (lambda t: t.to(torch.bfloat16) if t.is_floating_point() else t)(torch.as_tensor(a)))
    def _A_setup():
        B, S, D = 1, 2048, 512
        ns = torch.arange(S)[:, None] * torch.arange(S)[None, :]
        nd = torch.arange(D)[:, None] * torch.arange(D)[None, :]
        Ws_re = torch.cos(-2.0 * torch.pi * ns / S).to(float)
        Ws_im = torch.sin(-2.0 * torch.pi * ns / S).to(float)
        Wd_re = torch.cos(-2.0 * torch.pi * nd / D).to(float)
        Wd_im = torch.sin(-2.0 * torch.pi * nd / D).to(float)
        return {
            "x": _w((lambda *s: torch.randn(*s, dtype=torch.bfloat16) * 0.05)(B, S, D)),
            "dft_seq_re": _w(Ws_re),
            "dft_seq_im": _w(Ws_im),
            "dft_hid_re": _w(Wd_re),
            "dft_hid_im": _w(Wd_im),
        }
    _A_in = _A_setup()

    def _B_setup():
        B, S, D, F = 1, 2048, 512, 1792
        return {
            "x": _w((lambda *s: torch.randn(*s, dtype=torch.bfloat16) * 0.05)(B, S, D)),
            "w_gate": _w((lambda *s: torch.randn(*s, dtype=torch.bfloat16) * 1.6)(D, F)),
            "w_up": _w((lambda *s: torch.randn(*s, dtype=torch.bfloat16) * 0.8)(D, F)),
            "w_down": _w((lambda *s: torch.randn(*s, dtype=torch.bfloat16) * 0.8)(F, D)),
        }
    _B_in = _B_setup()

    return {
        "A_x": _A_in["x"],
        "A_dft_seq_re": _A_in["dft_seq_re"],
        "A_dft_seq_im": _A_in["dft_seq_im"],
        "A_dft_hid_re": _A_in["dft_hid_re"],
        "A_dft_hid_im": _A_in["dft_hid_im"],
        "B_x": _B_in["x"],
        "B_w_gate": _B_in["w_gate"],
        "B_w_up": _B_in["w_up"],
        "B_w_down": _B_in["w_down"],
        "gate_w": _w((lambda *s: torch.randn(*s, dtype=torch.bfloat16) * 0.05)(512) * 16.0),
    }

def reference(A_x, A_dft_seq_re, A_dft_seq_im, A_dft_hid_re, A_dft_hid_im, B_x, B_w_gate, B_w_up, B_w_down, gate_w):
    def _A_ref(x, dft_seq_re, dft_seq_im, dft_hid_re, dft_hid_im):
        a = torch.einsum("bsd,ed->bse", x, dft_hid_re)
        b = torch.einsum("bsd,ed->bse", x, dft_hid_im)
        y = torch.einsum("ts,bse->bte", dft_seq_re, a) - torch.einsum("ts,bse->bte", dft_seq_im, b)
        return y

    def _B_ref(x, w_gate, w_up, w_down):
        g = torch.einsum("bsd,df->bsf", x, w_gate)
        u = torch.einsum("bsd,df->bsf", x, w_up)
        h = _sigmoid(g) * u
        return torch.einsum("bsf,fd->bsd", h, w_down)

    x = A_x
    g = _sigmoid((x * gate_w).sum(-1, keepdims=True))
    a = _A_ref(x, A_dft_seq_re, A_dft_seq_im, A_dft_hid_re, A_dft_hid_im)
    b = _B_ref(x, B_w_gate, B_w_up, B_w_down)
    return g * a + (1 - g) * b
```

```python
import sys

NAME = "gated_mix__spectral_fnet__glu_gated_glu__prompt"

WS_MCAT = 0
MCAT_PITCH = 11776
MCAT_BYTES = 512 * MCAT_PITCH
WS_H = 8 << 20
H_BYTES = 2048 * 4096
WS_GATE = 16 << 20
WS_PART = 32 << 20

KA = dict(xa=0, cr=8, ci=16, dr=24, di=32, xb=40, wg=48, wu=56, wd=64, gw=72, out=80, dbg=88, ws=96)


class Gen:
    def __init__(s):
        s.L = []
        s.vm = []
        s.uid = 0

    def e(s, t):
        s.L.append("    " + t)

    def c(s, t):
        s.L.append("    ; " + t)

    def lab(s, l):
        s.L.append(l + ":")

    def newlab(s, p="L"):
        s.uid += 1
        return "%s_%d" % (p, s.uid)

    def vm_issue(s, tag, n=1):
        for _ in range(n):
            s.vm.append(tag)

    def vm_wait(s, tag):
        idx = [i for i, t in enumerate(s.vm) if t == tag]
        if not idx:
            return
        n = len(s.vm) - 1 - idx[-1]
        assert n <= 63, n
        s.e("s_waitcnt vmcnt(%d)" % n)
        s.vm = s.vm[idx[-1] + 1:]

    def vm_wait_all(s):
        s.e("s_waitcnt vmcnt(0)")
        s.vm = []

    def srd(s, d, lo, hi, nbytes, off=0):
        if off:
            s.e("s_add_u32 s%d, s%d, 0x%x" % (d, lo, off))
            s.e("s_addc_u32 s%d, s%d, 0" % (d + 1, hi))
        else:
            s.e("s_mov_b32 s%d, s%d" % (d, lo))
            s.e("s_mov_b32 s%d, s%d" % (d + 1, hi))
        s.e("s_and_b32 s%d, s%d, 0xffff" % (d + 1, d + 1))
        s.e("s_mov_b32 s%d, 0x%x" % (d + 2, nbytes))
        s.e("s_mov_b32 s%d, 0x00020000" % (d + 3))


def vr(a, n=1):
    return "v%d" % a if n == 1 else "v[%d:%d]" % (a, a + n - 1)


def sr(a, n=1):
    return "s%d" % a if n == 1 else "s[%d:%d]" % (a, a + n - 1)


def mfma(g, d, a, b, c=None):
    cs = vr(d, 16) if c is None else c
    g.e("v_mfma_f32_32x32x16_bf16 %s, %s, %s, %s" % (vr(d, 16), vr(a, 4), vr(b, 4), cs))


def interleave(g, mf, others, lead=0):
    for i, m in enumerate(mf):
        m()
        if i < len(others):
            for o in others[i]:
                o() if callable(o) else g.e(o)


def kernel_header(g, name):
    g.L.append(".globl %s" % name)
    g.L.append(".p2align 8")
    g.L.append(".type %s,@function" % name)
    g.lab(name)


def kd(name, vgpr, sgpr=102):
    return """.p2align 6
.amdhsa_kernel %s
  .amdhsa_next_free_vgpr %d
  .amdhsa_next_free_sgpr %d
  .amdhsa_accum_offset %d
  .amdhsa_group_segment_fixed_size 0
  .amdhsa_kernarg_size 104
  .amdhsa_user_sgpr_count 2
  .amdhsa_user_sgpr_kernarg_segment_ptr 1
  .amdhsa_system_sgpr_workgroup_id_x 1
.end_amdhsa_kernel
""" % (name, vgpr, sgpr, (min(vgpr, 256) + 3) // 4 * 4)


def pack_store16(g, acc, tmp, voff, srd, imm_base, neg=False, tag="st", soff="0"):
    for q in range(4):
        g.e("v_cvt_pk_bf16_f32 %s, %s, %s" % (vr(tmp + 2 * q), vr(acc + 4 * q), vr(acc + 4 * q + 1)))
        g.e("v_cvt_pk_bf16_f32 %s, %s, %s" % (vr(tmp + 2 * q + 1), vr(acc + 4 * q + 2), vr(acc + 4 * q + 3)))
    if neg:
        for i in range(8):
            g.e("v_xor_b32 %s, %s, %s" % (vr(tmp + i), neg, vr(tmp + i)))
    g.e("s_nop 1")
    for qq in range(2):
        g.e("v_permlane32_swap_b32 %s, %s" % (vr(tmp + 4 * qq), vr(tmp + 4 * qq + 2)))
        g.e("v_permlane32_swap_b32 %s, %s" % (vr(tmp + 4 * qq + 1), vr(tmp + 4 * qq + 3)))
    for qq in range(2):
        g.e("buffer_store_dwordx4 %s, %s, %s, %s offen offset:%d" % (vr(tmp + 4 * qq, 4), vr(voff), sr(srd, 4), soff, imm_base + 32 * qq))
        g.vm_issue(tag)
    g.e("s_nop 1")


def gen_k1(g):
    name = "k1_kernel"
    kernel_header(g, name)
    S_XB, S_WG, S_WU, S_H, S_XA, S_D, S_MC, S_WD, S_GT, S_GW = 8, 12, 16, 20, 24, 28, 32, 36, 40, 44
    sW, sXcd, sJ, sW4k, sT0, sT1, sT2, sNeg = 48, 49, 50, 51, 52, 53, 54, 55
    sFt, sTt, sEt, sSt = 56, 57, 58, 59
    sKo = 60
    sKo2 = 61
    P = 64
    g.e("s_cmp_ge_u32 s2, 256")
    g.e("s_cbranch_scc1 K1_END")
    g.e("s_load_dwordx16 s[64:79], s[0:1], 0")
    g.e("s_load_dwordx4 s[80:83], s[0:1], 64")
    g.e("s_load_dwordx2 s[84:85], s[0:1], 96")
    g.e("v_lshrrev_b32 v1, 6, v0")
    g.e("v_and_b32 v2, 63, v0")
    g.e("s_and_b32 s%d, s2, 7" % sXcd)
    g.e("v_readfirstlane_b32 s%d, v1" % sW)
    g.e("s_lshr_b32 s%d, s2, 3" % sJ)
    g.e("s_waitcnt lgkmcnt(0)")
    g.e("s_lshl_b32 s%d, s%d, 12" % (sW4k, sW))
    g.srd(S_XA, 64, 65, 2048 * 1024)
    g.srd(S_XB, 64, 65, 2048 * 1024)
    g.srd(S_WG, 76, 77, 512 * 3584)
    g.srd(S_WU, 78, 79, 512 * 3584)
    g.srd(S_WD, 80, 81, 1792 * 1024)
    g.srd(S_GW, 82, 83, 1024)
    g.srd(S_H, 84, 85, H_BYTES, WS_H)
    g.srd(S_MC, 84, 85, MCAT_BYTES, WS_MCAT)
    g.srd(S_GT, 84, 85, 8192, WS_GATE)
    g.e("s_and_b32 s%d, s%d, 1" % (sT0, sXcd))
    g.e("s_lshl_b32 s%d, s%d, 2" % (sT0, sT0))
    g.e("s_and_b32 s%d, s%d, 3" % (sT1, sJ))
    g.e("s_add_u32 s%d, s%d, s%d" % (sEt, sT0, sT1))
    g.e("s_lshr_b32 s%d, s%d, 1" % (sT0, sXcd))
    g.e("s_lshl_b32 s%d, s%d, 3" % (sT0, sT0))
    g.e("s_lshr_b32 s%d, s%d, 2" % (sT1, sJ))
    g.e("s_add_u32 s%d, s%d, s%d" % (sSt, sT0, sT1))
    g.e("s_cmp_lt_u32 s%d, 4" % sEt)
    g.e("s_cselect_b32 s%d, s70, s72" % sT0)
    g.e("s_cselect_b32 s%d, s71, s73" % sT1)
    g.e("s_cselect_b32 s%d, 0, 0x80008000" % sNeg)
    g.srd(S_D, sT0, sT1, 512 * 1024)

    vLane = 2
    vLdW, vLdX = 4, 8
    vLdA, vLdD = 12, 14
    vTr = 18
    vRdX = 20
    vRdA2, vRdD2 = 24, 28
    vT = 32
    vHo = 40
    vMo = 42
    FR = 48
    ACC = 128
    TMP = 96

    def nt_dma_offsets(vdst, n, rowbase_s, rows_per_wave, pitch):
        g.e("v_lshrrev_b32 v%d, 3, v%d" % (vT, vLane))
        g.e("s_mul_i32 s%d, s%d, %d" % (sT0, sW, rows_per_wave))
        g.e("s_add_u32 s%d, s%d, s%d" % (sT0, sT0, rowbase_s))
        g.e("v_add_u32 v%d, s%d, v%d" % (vT, sT0, vT))
        g.e("s_mov_b32 s%d, %d" % (sT1, pitch))
        g.e("v_mul_lo_u32 v%d, v%d, s%d" % (vT, vT, sT1))
        g.e("v_lshrrev_b32 v%d, 4, v%d" % (vT + 1, vLane))
        g.e("v_and_b32 v%d, 7, v%d" % (vT + 2, vLane))
        for jj in range(n):
            g.e("v_add_u32 v%d, %d, v%d" % (vT + 3, 4 * jj, vT + 1))
            g.e("v_and_b32 v%d, 7, v%d" % (vT + 3, vT + 3))
            g.e("v_xor_b32 v%d, v%d, v%d" % (vT + 3, vT + 3, vT + 2))
            g.e("v_lshlrev_b32 v%d, 4, v%d" % (vT + 3, vT + 3))
            g.e("v_add_u32 v%d, v%d, v%d" % (vT + 3, vT + 3, vT))
            g.e("v_add_u32 v%d, 0x%x, v%d" % (vdst + jj, jj * (8 * pitch - 1024), vT + 3))

    def nt_read_addrs(vdst, rowoff_s, base):
        g.e("v_and_b32 v%d, 31, v%d" % (vT, vLane))
        g.e("v_lshrrev_b32 v%d, 1, v%d" % (vT + 1, vT))
        g.e("v_and_b32 v%d, 7, v%d" % (vT + 1, vT + 1))
        g.e("v_lshrrev_b32 v%d, 5, v%d" % (vT + 2, vLane))
        g.e("v_xor_b32 v%d, v%d, v%d" % (vT + 1, vT + 1, vT + 2))
        g.e("v_lshlrev_b32 v%d, 4, v%d" % (vT + 1, vT + 1))
        g.e("v_add_u32 v%d, s%d, v%d" % (vT, rowoff_s, vT))
        g.e("v_lshlrev_b32 v%d, 7, v%d" % (vT, vT))
        for j in range(4):
            g.e("v_xor_b32 v%d, %d, v%d" % (vT + 3, j << 5, vT + 1))
            g.e("v_add_u32 v%d, v%d, v%d" % (vT + 3, vT + 3, vT))
            if base:
                g.e("v_add_u32 v%d, 0x%x, v%d" % (vdst + j, base, vT + 3))
            else:
                g.e("v_mov_b32 v%d, v%d" % (vdst + j, vT + 3))

    g.e("s_lshl_b32 s%d, s%d, 6" % (sT2, sSt))
    nt_dma_offsets(vLdA, 2, sT2, 16, 1024)
    g.e("s_and_b32 s%d, s%d, 3" % (sT2, sEt))
    g.e("s_lshl_b32 s%d, s%d, 7" % (sT2, sT2))
    nt_dma_offsets(vLdD, 4, sT2, 32, 1024)
    g.e("s_lshr_b32 s%d, s%d, 1" % (sT2, sW))
    g.e("s_lshl_b32 s%d, s%d, 5" % (sT2, sT2))
    nt_read_addrs(vRdA2, sT2, 0)
    g.e("s_and_b32 s%d, s%d, 1" % (sT2, sW))
    g.e("s_lshl_b32 s%d, s%d, 6" % (sT2, sT2))
    nt_read_addrs(vRdD2, sT2, 8192)
    g.e("s_and_b32 s%d, s%d, 3" % (sT0, sEt))
    g.e("s_lshl_b32 s%d, s%d, 7" % (sT0, sT0))
    g.e("s_add_u32 s%d, s%d, s%d" % (sT0, sT0, sT2))
    g.e("v_and_b32 v%d, 31, v%d" % (vT, vLane))
    g.e("v_add_u32 v%d, s%d, v%d" % (vT, sT0, vT))
    g.e("s_mov_b32 s%d, %d" % (sT1, MCAT_PITCH))
    g.e("v_mul_lo_u32 v%d, v%d, s%d" % (vT, vT, sT1))
    g.e("s_lshr_b32 s%d, s%d, 2" % (sT0, sEt))
    g.e("s_lshl_b32 s%d, s%d, 12" % (sT0, sT0))
    g.e("s_lshl_b32 s%d, s%d, 7" % (sT1, sSt))
    g.e("s_add_u32 s%d, s%d, s%d" % (sT0, sT0, sT1))
    g.e("s_lshr_b32 s%d, s%d, 1" % (sT1, sW))
    g.e("s_lshl_b32 s%d, s%d, 6" % (sT1, sT1))
    g.e("s_add_u32 s%d, s%d, s%d" % (sT0, sT0, sT1))
    g.e("v_lshrrev_b32 v%d, 5, v%d" % (vT + 1, vLane))
    g.e("v_lshlrev_b32 v%d, 4, v%d" % (vT + 1, vT + 1))
    g.e("v_add3_u32 v%d, v%d, v%d, s%d" % (vMo, vT, vT + 1, sT0))
    g.e("v_add_u32 v%d, 0x%x, v%d" % (vMo + 1, 32 * MCAT_PITCH, vMo))

    def ab_slot(s):
        return (98304 + 24576 * s) % 147456

    def ab_dma(stage):
        base = ab_slot(stage)
        out = []

        def first():
            g.e("s_mov_b32 s%d, %d" % (sKo2, stage * 128))
            g.e("s_lshr_b32 s%d, s%d, 1" % (sT0, sW4k))
            g.e("s_add_u32 m0, s%d, 0x%x" % (sT0, base))
            g.e("s_nop 0")
        for jj in range(2):
            def f(jj=jj):
                if jj == 0:
                    first()
                g.e("buffer_load_dwordx4 v%d, %s, s%d offen offset:%d lds" % (vLdA + jj, sr(S_XA, 4), sKo2, jj * 1024))
                g.vm_issue("ab%d" % stage)
            out.append(f)
        for jj in range(4):
            def f(jj=jj):
                if jj == 0:
                    g.e("s_add_u32 m0, s%d, 0x%x" % (sW4k, base + 8192))
                    g.e("s_nop 0")
                g.e("buffer_load_dwordx4 v%d, %s, s%d offen offset:%d lds" % (vLdD + jj, sr(S_D, 4), sKo2, jj * 1024))
                g.vm_issue("ab%d" % stage)
            out.append(f)
        return out

    g.e("s_cmp_ge_u32 s%d, 28" % sJ)
    g.e("s_cbranch_scc1 K1_MISC")

    g.e("s_mul_i32 s%d, s%d, 37" % (sT0, sJ))
    g.e("s_lshr_b32 s%d, s%d, 8" % (sT0, sT0))
    g.e("s_mul_i32 s%d, s%d, 7" % (sT1, sT0))
    g.e("s_sub_u32 s%d, s%d, s%d" % (sT1, sJ, sT1))
    g.e("s_lshr_b32 s%d, s%d, 1" % (sT2, sXcd))
    g.e("s_lshl_b32 s%d, s%d, 2" % (sT2, sT2))
    g.e("s_add_u32 s%d, s%d, s%d" % (sTt, sT2, sT0))
    g.e("s_and_b32 s%d, s%d, 1" % (sT2, sXcd))
    g.e("s_mul_i32 s%d, s%d, 7" % (sT2, sT2))
    g.e("s_add_u32 s%d, s%d, s%d" % (sFt, sT2, sT1))
    g.e("v_lshrrev_b32 v%d, 4, v%d" % (vT, vLane))
    g.e("v_lshlrev_b32 v%d, 2, v%d" % (vT + 1, vT))
    g.e("v_and_b32 v%d, 15, v%d" % (vT + 2, vLane))
    g.e("v_xor_b32 v%d, v%d, v%d" % (vT + 1, vT + 1, vT + 2))
    g.e("v_lshlrev_b32 v%d, 4, v%d" % (vT + 1, vT + 1))
    g.e("s_lshl_b32 s%d, s%d, 4" % (sT0, sW))
    g.e("v_add_u32 v%d, s%d, v%d" % (vT, sT0, vT))
    g.e("s_movk_i32 s%d, 3584" % sT1)
    g.e("v_mul_lo_u32 v%d, v%d, s%d" % (vT, vT, sT1))
    g.e("s_lshl_b32 s%d, s%d, 8" % (sT0, sFt))
    g.e("v_add3_u32 v%d, v%d, v%d, s%d" % (vLdW, vT, vT + 1, sT0))
    for jj in range(1, 4):
        g.e("v_add_u32 v%d, 0x%x, v%d" % (vLdW + jj, jj * (4 * 3584 - 1024), vLdW))
    g.e("s_lshl_b32 s%d, s%d, 7" % (sT2, sTt))
    nt_dma_offsets(vLdX, 4, sT2, 32, 1024)
    g.e("s_and_b32 s%d, s%d, 1" % (sT2, sW))
    g.e("s_lshl_b32 s%d, s%d, 6" % (sT2, sT2))
    nt_read_addrs(vRdX, sT2, 32768)
    g.e("v_lshrrev_b32 v%d, 5, v%d" % (vT, vLane))
    g.e("v_lshlrev_b32 v%d, 3, v%d" % (vT, vT))
    g.e("v_bfe_u32 v%d, v%d, 2, 2" % (vT + 1, vLane))
    g.e("v_add_u32 v%d, v%d, v%d" % (vT, vT, vT + 1))
    g.e("v_lshlrev_b32 v%d, 8, v%d" % (vT, vT))
    g.e("v_bfe_u32 v%d, v%d, 4, 1" % (vT + 2, vLane))
    g.e("v_lshlrev_b32 v%d, 1, v%d" % (vT + 2, vT + 2))
    g.e("v_bfe_u32 v%d, v%d, 1, 1" % (vT + 3, vLane))
    g.e("v_add_u32 v%d, v%d, v%d" % (vT + 2, vT + 2, vT + 3))
    g.e("v_and_b32 v%d, 1, v%d" % (vT + 3, vLane))
    g.e("v_lshlrev_b32 v%d, 3, v%d" % (vT + 3, vT + 3))
    g.e("v_add_u32 v%d, v%d, v%d" % (vT, vT, vT + 3))
    g.e("s_lshr_b32 s%d, s%d, 1" % (sT0, sW))
    g.e("s_lshl_b32 s%d, s%d, 1" % (sT0, sT0))
    for fb in range(2):
        g.e("s_add_u32 s%d, s%d, %d" % (sT1, sT0, fb))
        g.e("v_xor_b32 v%d, s%d, v%d" % (vT + 3, sT1, vT + 1))
        g.e("v_lshlrev_b32 v%d, 2, v%d" % (vT + 3, vT + 3))
        g.e("v_add_u32 v%d, v%d, v%d" % (vT + 3, vT + 3, vT + 2))
        g.e("v_lshlrev_b32 v%d, 4, v%d" % (vT + 3, vT + 3))
        g.e("v_add_u32 v%d, v%d, v%d" % (vTr + fb, vT + 3, vT))
    g.e("s_lshl_b32 s%d, s%d, 7" % (sT0, sTt))
    g.e("s_add_u32 s%d, s%d, s%d" % (sT0, sT0, sT2))
    g.e("v_and_b32 v%d, 31, v%d" % (vT, vLane))
    g.e("v_add_u32 v%d, s%d, v%d" % (vT, sT0, vT))
    g.e("v_lshlrev_b32 v%d, 12, v%d" % (vT, vT))
    g.e("s_lshl_b32 s%d, s%d, 8" % (sT0, sFt))
    g.e("s_lshr_b32 s%d, s%d, 1" % (sT1, sW))
    g.e("s_lshl_b32 s%d, s%d, 7" % (sT1, sT1))
    g.e("s_add_u32 s%d, s%d, s%d" % (sT0, sT0, sT1))
    g.e("v_lshrrev_b32 v%d, 5, v%d" % (vT + 1, vLane))
    g.e("v_lshlrev_b32 v%d, 4, v%d" % (vT + 1, vT + 1))
    g.e("v_add3_u32 v%d, v%d, v%d, s%d" % (vHo, vT, vT + 1, sT0))
    g.e("v_add_u32 v%d, 0x%x, v%d" % (vHo + 1, 32 * 4096, vHo))

    def h_dma(stage):
        base = (stage % 3) * 49152
        out = []
        for which, (srd, lo) in enumerate(((S_WG, 0), (S_WU, 16384))):
            for jj in range(4):
                def f(jj=jj, srd=srd, lo=lo, which=which):
                    if jj == 0:
                        if which == 0:
                            g.e("s_mov_b32 s%d, 0x%x" % (sKo, stage * 64 * 3584))
                        g.e("s_add_u32 m0, s%d, 0x%x" % (sW4k, base + lo))
                        g.e("s_nop 0")
                    g.e("buffer_load_dwordx4 v%d, %s, s%d offen offset:%d lds" % (vLdW + jj, sr(srd, 4), sKo, jj * 1024))
                    g.vm_issue("h%d" % stage)
                out.append(f)
        for jj in range(4):
            def f(jj=jj):
                if jj == 0:
                    g.e("s_mov_b32 s%d, %d" % (sKo2, stage * 128))
                    g.e("s_add_u32 m0, s%d, 0x%x" % (sW4k, base + 32768))
                    g.e("s_nop 0")
                g.e("buffer_load_dwordx4 v%d, %s, s%d offen offset:%d lds" % (vLdX + jj, sr(S_XB, 4), sKo2, jj * 1024))
                g.vm_issue("h%d" % stage)
            out.append(f)
        return out

    vA0 = 44
    vCurTr, vCurX = 100, 104

    def h_set_addrs(stage):
        base = (stage % 3) * 49152
        out = []
        for fb in range(2):
            out.append("v_add_u32 v%d, 0x%x, v%d" % (vCurTr + fb, base, vTr + fb))
        for j in range(4):
            out.append("v_add_u32 v%d, 0x%x, v%d" % (vCurX + j, base, vRdX + j))
        return out

    def h_reads(stage, j, fs):
        b = FR + 24 * fs
        out = []
        for mat in range(2):
            for fb in range(2):
                for hf in range(2):
                    out.append("ds_read_b64_tr_b16 %s, v%d offset:%d" % (vr(b + 8 * mat + 4 * fb + 2 * hf, 2), vCurTr + fb, mat * 16384 + j * 4096 + hf * 1024))
        for bn in range(2):
            out.append("ds_read_b128 %s, v%d offset:%d" % (vr(b + 16 + 4 * bn, 4), vCurX + j, bn * 4096))
        return out

    def h_mfmas(fs, first):
        b = FR + 24 * fs
        out = []
        for mat in range(2):
            for fb in range(2):
                for bn in range(2):
                    d = ACC + 64 * mat + 16 * (2 * fb + bn)
                    out.append(lambda d=d, a=b + 8 * mat + 4 * fb, bb=b + 16 + 4 * bn: mfma(g, d, a, bb, "0" if first else None))
        return out

    for st in range(3):
        for f in h_dma(st):
            f()
    g.vm_wait("h0")
    g.e("s_barrier")
    for t in h_set_addrs(0):
        g.e(t)
    for t in h_reads(0, 0, 0):
        g.e(t)
    fs = 0
    for p in range(8):
        if 1 <= p <= 5:
            dm = h_dma(p + 2)
        elif p == 6:
            dm = ab_dma(0) + ab_dma(1)
        elif p == 7:
            dm = ab_dma(2) + ab_dma(3)
        else:
            dm = []
        dmq = list(dm)
        for j in range(4):
            g.c("h stage %d sub %d" % (p, j))
            last = (j == 3)
            if last:
                g.e("s_waitcnt lgkmcnt(0)")
                if p < 7:
                    g.vm_wait("h%d" % (p + 1))
                g.e("s_barrier")
                rd = (h_set_addrs(p + 1) + h_reads(p + 1, 0, fs ^ 1)) if p < 7 else []
            else:
                g.e("s_waitcnt lgkmcnt(0)")
                rd = h_reads(p, j + 1, fs ^ 1)
            mf = h_mfmas(fs, p == 0 and j == 0)
            others = [[] for _ in range(8)]
            if last and p < 7:
                others[0] = rd[0:8]
                others[1] = rd[8:10]
                others[2] = rd[10:12]
                others[3] = rd[12:14]
                others[4] = rd[14:16]
            else:
                for i in range(len(rd) // 2):
                    others[i] = rd[2 * i:2 * i + 2]
            if not last:
                for i in (4, 5, 6, 7):
                    if dmq:
                        others[i].append(dmq.pop(0))
            interleave(g, mf, others)
            fs ^= 1
        assert not dmq
    for f in ab_dma(4) + ab_dma(5):
        f()
    g.e("s_nop 7")
    g.e("s_nop 7")
    g.e("s_mov_b32 s%d, 0xbfb8aa3b" % sT0)
    for blk in range(4):
        ga = ACC + 16 * blk
        ua = ACC + 64 + 16 * blk
        t = TMP + 16
        for i in range(16):
            g.e("v_mul_f32 v%d, s%d, v%d" % (t + i, sT0, ga + i))
        for i in range(16):
            g.e("v_exp_f32 v%d, v%d" % (t + i, t + i))
        for i in range(16):
            g.e("v_add_f32 v%d, 1.0, v%d" % (t + i, t + i))
        for i in range(16):
            g.e("v_rcp_f32 v%d, v%d" % (t + i, t + i))
        for i in range(16):
            g.e("v_mul_f32 v%d, v%d, v%d" % (ga + i, ua + i, t + i))
        fb, bn = blk >> 1, blk & 1
        pack_store16(g, ga, TMP + 8 * (blk & 1), vHo + bn, S_H, fb * 64, tag="hst")
    g.e("s_branch K1_AB")

    g.lab("K1_MISC")
    saved_vm = list(g.vm)
    g.vm = []
    sM = sFt
    g.e("s_sub_u32 s%d, s%d, 28" % (sT0, sJ))
    g.e("s_lshl_b32 s%d, s%d, 2" % (sM, sXcd))
    g.e("s_add_u32 s%d, s%d, s%d" % (sM, sM, sT0))
    g.e("v_lshrrev_b32 v%d, 3, v%d" % (vT, vLane))
    g.e("s_lshl_b32 s%d, s%d, 4" % (sT0, sW))
    g.e("v_add_u32 v%d, s%d, v%d" % (vT, sT0, vT))
    g.e("v_lshlrev_b32 v%d, 10, v%d" % (vT, vT))
    g.e("v_and_b32 v%d, 7, v%d" % (vT + 1, vLane))
    g.e("v_lshlrev_b32 v%d, 4, v%d" % (vT + 1, vT + 1))
    g.e("v_add_u32 v%d, v%d, v%d" % (vLdW, vT, vT + 1))
    g.e("v_add_u32 v%d, 0x%x, v%d" % (vLdW + 1, 8 * 1024 - 1024, vLdW))
    g.e("s_mul_i32 s%d, s%d, 7" % (sTt, sM))
    for i in range(7):
        g.e("s_add_u32 s%d, s%d, %d" % (sT0, sTt, i))
        g.e("s_lshr_b32 s%d, s%d, 3" % (sT1, sT0))
        g.e("s_and_b32 s%d, s%d, 7" % (sT0, sT0))
        g.e("s_lshl_b32 s%d, s%d, 16" % (sT1, sT1))
        g.e("s_lshl_b32 s%d, s%d, 7" % (sT0, sT0))
        g.e("s_add_u32 s%d, s%d, s%d" % (sKo, sT0, sT1))
        g.e("s_lshr_b32 s%d, s%d, 1" % (sT0, sW4k))
        g.e("s_add_u32 m0, s%d, 0x%x" % (sT0, i * 8192))
        g.e("s_nop 0")
        for jj in range(2):
            g.e("buffer_load_dwordx4 v%d, %s, s%d offen offset:%d lds" % (vLdW + jj, sr(S_WD, 4), sKo, jj * 1024))
            g.vm_issue("wd")
    g.e("v_lshlrev_b32 v%d, 4, v%d" % (vT, vLane))
    g.e("buffer_load_dwordx4 %s, v%d, %s, 0 offen" % (vr(TMP, 4), vT, sr(S_GW, 4)))
    g.vm_issue("gw")
    g.e("s_lshl_b32 s%d, s%d, 6" % (sT0, sM))
    g.e("s_lshl_b32 s%d, s%d, 4" % (sT1, sW))
    g.e("s_add_u32 s%d, s%d, s%d" % (sSt + 3, sT0, sT1))
    sTok = sSt + 3
    g.e("s_lshl_b32 s%d, s%d, 10" % (sT0, sTok))
    g.e("v_add_u32 v%d, s%d, v%d" % (vT + 1, sT0, vT))
    for i in range(16):
        g.e("s_movk_i32 s%d, %d" % (sT0, i * 1024))
        g.e("buffer_load_dwordx4 %s, v%d, %s, s%d offen" % (vr(ACC + 4 * i, 4), vT + 1, sr(S_XA, 4), sT0))
        g.vm_issue("gx")
    g.vm_wait("gx")
    for d in range(4):
        g.e("v_lshlrev_b32 v%d, 16, v%d" % (TMP + 8 + 2 * d, TMP + d))
        g.e("v_and_b32 v%d, 0xffff0000, v%d" % (TMP + 9 + 2 * d, TMP + d))
    PS = 192
    for i in range(16):
        for d in range(4):
            g.e("v_lshlrev_b32 v%d, 16, v%d" % (vT + 2, ACC + 4 * i + d))
            g.e("v_and_b32 v%d, 0xffff0000, v%d" % (vT + 3, ACC + 4 * i + d))
            if d == 0:
                g.e("v_mul_f32 v%d, v%d, v%d" % (PS + i, vT + 2, TMP + 8))
            else:
                g.e("v_fmac_f32 v%d, v%d, v%d" % (PS + i, vT + 2, TMP + 8 + 2 * d))
            g.e("v_fmac_f32 v%d, v%d, v%d" % (PS + i, vT + 3, TMP + 9 + 2 * d))
    for x in (0x041F, 0x081F, 0x101F, 0x201F, 0x401F):
        for i in range(16):
            g.e("ds_swizzle_b32 v%d, v%d offset:0x%x" % (PS + 16 + i, PS + i, x))
        g.e("s_waitcnt lgkmcnt(0)")
        for i in range(16):
            g.e("v_add_f32 v%d, v%d, v%d" % (PS + i, PS + i, PS + 16 + i))
    for i in range(16):
        g.e("v_mov_b32 v%d, v%d" % (PS + 16 + i, PS + i))
    g.e("s_nop 1")
    for i in range(16):
        g.e("v_permlane32_swap_b32 v%d, v%d" % (PS + 16 + i, PS + i))
    for i in range(16):
        g.e("v_add_f32 v%d, v%d, v%d" % (PS + i, PS + i, PS + 16 + i))
    g.e("v_mov_b32 v%d, 0" % (vT + 2))
    g.e("s_nop 1")
    for i in range(16):
        g.e("v_readlane_b32 s%d, v%d, 0" % (sT0, PS + i))
        g.e("s_nop 3")
        g.e("v_writelane_b32 v%d, s%d, %d" % (vT + 2, sT0, i))
    g.e("s_mov_b32 s%d, 0xbfb8aa3b" % sT0)
    g.e("v_mul_f32 v%d, s%d, v%d" % (vT + 2, sT0, vT + 2))
    g.e("v_exp_f32 v%d, v%d" % (vT + 2, vT + 2))
    g.e("s_nop 0")
    g.e("v_add_f32 v%d, 1.0, v%d" % (vT + 2, vT + 2))
    g.e("v_rcp_f32 v%d, v%d" % (vT + 2, vT + 2))
    g.e("v_add_u32 v%d, s%d, v%d" % (vT + 3, sTok, vLane))
    g.e("v_lshlrev_b32 v%d, 2, v%d" % (vT + 3, vT + 3))
    g.e("v_cmp_gt_u32 vcc, 16, v%d" % vLane)
    g.e("s_and_saveexec_b64 s[86:87], vcc")
    g.e("buffer_store_dword v%d, v%d, %s, 0 offen" % (vT + 2, vT + 3, sr(S_GT, 4)))
    g.vm_issue("gst")
    g.e("s_mov_b64 exec, s[86:87]")
    g.vm_wait("wd")
    g.e("s_barrier")
    g.e("v_lshrrev_b32 v%d, 5, v%d" % (vT, vLane))
    g.e("v_lshlrev_b32 v%d, 3, v%d" % (vT, vT))
    g.e("v_bfe_u32 v%d, v%d, 2, 2" % (vT + 1, vLane))
    g.e("v_add_u32 v%d, v%d, v%d" % (vT, vT, vT + 1))
    g.e("s_lshr_b32 s%d, s%d, 1" % (sT0, sW))
    g.e("s_lshl_b32 s%d, s%d, 5" % (sT0, sT0))
    g.e("v_add_u32 v%d, s%d, v%d" % (vT, sT0, vT))
    g.e("v_lshlrev_b32 v%d, 7, v%d" % (vT, vT))
    g.e("v_bfe_u32 v%d, v%d, 4, 1" % (vT + 1, vLane))
    g.e("v_lshlrev_b32 v%d, 5, v%d" % (vT + 1, vT + 1))
    g.e("v_and_b32 v%d, 3, v%d" % (vT + 2, vLane))
    g.e("v_lshlrev_b32 v%d, 3, v%d" % (vT + 2, vT + 2))
    g.e("v_add3_u32 v%d, v%d, v%d, v%d" % (vT, vT, vT + 1, vT + 2))
    g.e("s_and_b32 s%d, s%d, 1" % (sT1, sW))
    g.e("s_lshl_b32 s%d, s%d, 6" % (sT1, sT1))
    g.e("v_add_u32 v%d, s%d, v%d" % (vTr, sT1, vT))
    for i in range(7):
        for j in range(2):
            for hf in range(2):
                g.e("ds_read_b64_tr_b16 %s, v%d offset:%d" % (vr(ACC + 8 * i + 4 * j + 2 * hf, 2), vTr, i * 8192 + j * 2048 + hf * 512))
    g.e("v_and_b32 v%d, 31, v%d" % (vT, vLane))
    g.e("s_lshr_b32 s%d, s%d, 1" % (sT1, sT1))
    g.e("v_add_u32 v%d, s%d, v%d" % (vT, sT1, vT))
    g.e("s_mov_b32 s%d, %d" % (sT1, MCAT_PITCH))
    g.e("v_mul_lo_u32 v%d, v%d, s%d" % (vT, vT, sT1))
    g.e("v_lshrrev_b32 v%d, 5, v%d" % (vT + 1, vLane))
    g.e("v_lshlrev_b32 v%d, 4, v%d" % (vT + 1, vT + 1))
    g.e("s_lshl_b32 s%d, s%d, 1" % (sT0, sT0))
    g.e("s_add_u32 s%d, s%d, 8192" % (sT0, sT0))
    g.e("v_add3_u32 v%d, v%d, v%d, s%d" % (vT, vT, vT + 1, sT0))
    g.e("s_waitcnt lgkmcnt(0)")
    for i in range(7):
        g.e("s_add_u32 s%d, s%d, %d" % (sT0, sTt, i))
        g.e("s_lshr_b32 s%d, s%d, 3" % (sT1, sT0))
        g.e("s_and_b32 s%d, s%d, 7" % (sT0, sT0))
        g.e("s_lshl_b32 s%d, s%d, 7" % (sT1, sT1))
        g.e("s_mul_i32 s%d, s%d, %d" % (sT0, sT0, 64 * MCAT_PITCH))
        g.e("s_add_u32 s%d, s%d, s%d" % (sKo, sT0, sT1))
        for j in range(2):
            g.e("buffer_store_dwordx4 %s, v%d, %s, s%d offen offset:%d" % (vr(ACC + 8 * i + 4 * j, 4), vT, sr(S_MC, 4), sKo, 32 * j))
            g.vm_issue("wst")
    g.e("s_barrier")
    for st in range(6):
        for f in ab_dma(st):
            f()
    g.vm_wait_all()
    g.vm = saved_vm
    g.lab("K1_AB")
    AFR = 48
    AACC = 192
    vCa, vCd = 32, 36

    def ab_reads(stage, fs):
        base = ab_slot(stage)
        b = AFR + 48 * fs
        out = []
        for j in range(4):
            out.append("v_add_u32 v%d, 0x%x, v%d" % (vCa + j, base, vRdA2 + j))
            out.append("v_add_u32 v%d, 0x%x, v%d" % (vCd + j, base, vRdD2 + j))
        for j in range(4):
            out.append("ds_read_b128 %s, v%d" % (vr(b + 12 * j, 4), vCa + j))
            for bn in range(2):
                out.append("ds_read_b128 %s, v%d offset:%d" % (vr(b + 12 * j + 4 + 4 * bn, 4), vCd + j, bn * 4096))
        return out

    g.vm_wait("ab0")
    g.e("s_barrier")
    for t in ab_reads(0, 0):
        g.e(t)
    fs = 0
    for s in range(8):
        g.c("ab stage %d" % s)
        g.e("s_waitcnt lgkmcnt(0)")
        if s < 7:
            g.vm_wait("ab%d" % (s + 1))
        g.e("s_barrier")
        rd = ab_reads(s + 1, fs ^ 1) if s < 7 else []
        dm = ab_dma(s + 6) if s + 6 < 8 else []
        mf = []
        b = AFR + 48 * fs
        for j in range(4):
            for bn in range(2):
                mf.append(lambda j=j, bn=bn, b=b, s=s: mfma(g, AACC + 16 * bn, b + 12 * j, b + 12 * j + 4 + 4 * bn, "0" if (s == 0 and j == 0) else None))
        others = [[] for _ in range(8)]
        if rd:
            others[0] = rd[0:8] + rd[8:10]
            k = 10
            for i in range(1, 6):
                others[i] = rd[k:k + 2]
                k += 2
        for i in range(6):
            if dm:
                others[i + 2 if i < 6 else 7].append(dm.pop(0))
        interleave(g, mf, others)
        fs ^= 1
    g.e("s_nop 7")
    g.e("s_nop 7")
    for bn in range(2):
        pack_store16(g, AACC + 16 * bn, 96 + 8 * bn, vMo + bn, S_MC, 0, neg="s%d" % sNeg, tag="mst")
    g.lab("K1_END")
    g.e("s_endpgm")


def gen_k2(g):
    name = "k2_kernel"
    kernel_header(g, name)
    NS = 4
    NU = 23
    S_M, S_N, S_GT, S_P = 8, 12, 16, 20
    sW, sXcd, sJ, sW4k, sT0, sT1, sT2 = 24, 25, 26, 27, 28, 29, 30
    sKc, sTe, sTt, sLU, sI, sN1, sLdsW, sLdsR, sKM, sKN = 31, 32, 33, 34, 35, 36, 37, 38, 39, 40
    sCr, sCi, sHp = 44, 46, 48
    g.e("s_cmp_ge_u32 s2, 256")
    g.e("s_cbranch_scc1 K2_END")
    g.e("s_load_dwordx4 s[44:47], s[0:1], 8")
    g.e("s_load_dwordx2 s[50:51], s[0:1], 96")
    vLane = 2
    g.e("v_lshrrev_b32 v1, 6, v0")
    g.e("v_and_b32 v2, 63, v0")
    g.e("s_and_b32 s%d, s2, 7" % sXcd)
    g.e("v_readfirstlane_b32 s%d, v1" % sW)
    g.e("s_lshr_b32 s%d, s2, 3" % sJ)
    g.e("s_and_b32 s%d, s%d, 3" % (sKc, sXcd))
    g.e("s_and_b32 s%d, s%d, 3" % (sTe, sJ))
    g.e("s_lshr_b32 s%d, s%d, 2" % (sT0, sXcd))
    g.e("s_lshl_b32 s%d, s%d, 3" % (sT0, sT0))
    g.e("s_lshr_b32 s%d, s%d, 2" % (sT1, sJ))
    g.e("s_add_u32 s%d, s%d, s%d" % (sTt, sT0, sT1))
    g.e("s_lshl_b32 s%d, s%d, 12" % (sW4k, sW))
    g.e("s_mul_i32 s%d, s%d, %d" % (sLU, sKc, NU))
    g.e("s_sub_i32 s%d, 64, s%d" % (sN1, sLU))
    g.e("s_max_i32 s%d, s%d, 0" % (sN1, sN1))
    g.e("s_min_i32 s%d, s%d, %d" % (sN1, sN1, NU))
    g.e("s_waitcnt lgkmcnt(0)")
    g.srd(S_M, 50, 51, MCAT_BYTES, WS_MCAT)
    g.e("s_add_u32 s%d, s50, 0x%x" % (sHp, WS_H))
    g.e("s_addc_u32 s%d, s51, 0" % (sHp + 1))
    g.srd(S_GT, 50, 51, 8192, WS_GATE)
    g.srd(S_P, 50, 51, 16 << 20, WS_PART)
    g.e("s_mov_b32 s%d, 0x800000" % (S_N + 2))
    g.e("s_mov_b32 s%d, 0x00020000" % (S_N + 3))

    vLdM, vLdN = 4, 8
    vRdA, vRdB = 12, 16
    vCa, vCb = 20, 24
    vT = 28
    FR = 32
    ACC = 64
    SAV = 128
    vG = 192
    TMP = 200

    def nt_dma_offsets(vdst, n, rowbase_s, rows_per_wave, pitch):
        g.e("v_lshrrev_b32 v%d, 3, v%d" % (vT, vLane))
        g.e("s_mul_i32 s%d, s%d, %d" % (sT0, sW, rows_per_wave))
        g.e("s_add_u32 s%d, s%d, s%d" % (sT0, sT0, rowbase_s))
        g.e("v_add_u32 v%d, s%d, v%d" % (vT, sT0, vT))
        g.e("s_mov_b32 s%d, %d" % (sT1, pitch))
        g.e("v_mul_lo_u32 v%d, v%d, s%d" % (vT, vT, sT1))
        g.e("v_lshrrev_b32 v%d, 4, v%d" % (vT + 1, vLane))
        g.e("v_and_b32 v%d, 7, v%d" % (vT + 2, vLane))
        for jj in range(n):
            g.e("v_add_u32 v%d, %d, v%d" % (vT + 3, 4 * jj, vT + 1))
            g.e("v_and_b32 v%d, 7, v%d" % (vT + 3, vT + 3))
            g.e("v_xor_b32 v%d, v%d, v%d" % (vT + 3, vT + 3, vT + 2))
            g.e("v_lshlrev_b32 v%d, 4, v%d" % (vT + 3, vT + 3))
            g.e("v_add_u32 v%d, v%d, v%d" % (vT + 3, vT + 3, vT))
            g.e("v_add_u32 v%d, 0x%x, v%d" % (vdst + jj, jj * (8 * pitch - 1024), vT + 3))

    def nt_read_addrs(vdst, rowoff_s, base):
        g.e("v_and_b32 v%d, 31, v%d" % (vT, vLane))
        g.e("v_lshrrev_b32 v%d, 1, v%d" % (vT + 1, vT))
        g.e("v_and_b32 v%d, 7, v%d" % (vT + 1, vT + 1))
        g.e("v_lshrrev_b32 v%d, 5, v%d" % (vT + 2, vLane))
        g.e("v_xor_b32 v%d, v%d, v%d" % (vT + 1, vT + 1, vT + 2))
        g.e("v_lshlrev_b32 v%d, 4, v%d" % (vT + 1, vT + 1))
        g.e("v_add_u32 v%d, s%d, v%d" % (vT, rowoff_s, vT))
        g.e("v_lshlrev_b32 v%d, 7, v%d" % (vT, vT))
        for j in range(4):
            g.e("v_xor_b32 v%d, %d, v%d" % (vT + 3, j << 5, vT + 1))
            g.e("v_add_u32 v%d, v%d, v%d" % (vT + 3, vT + 3, vT))
            if base:
                g.e("v_add_u32 v%d, 0x%x, v%d" % (vdst + j, base, vT + 3))
            else:
                g.e("v_mov_b32 v%d, v%d" % (vdst + j, vT + 3))

    g.e("s_lshl_b32 s%d, s%d, 7" % (sT2, sTe))
    nt_dma_offsets(vLdM, 4, sT2, 32, MCAT_PITCH)
    g.e("s_lshl_b32 s%d, s%d, 7" % (sT2, sTt))
    nt_dma_offsets(vLdN, 4, sT2, 32, 4096)
    g.e("s_lshr_b32 s%d, s%d, 1" % (sT2, sW))
    g.e("s_lshl_b32 s%d, s%d, 6" % (sT2, sT2))
    nt_read_addrs(vRdA, sT2, 0)
    g.e("s_and_b32 s%d, s%d, 1" % (sT2, sW))
    g.e("s_lshl_b32 s%d, s%d, 6" % (sT2, sT2))
    nt_read_addrs(vRdB, sT2, 16384)
    g.e("s_lshl_b32 s%d, s%d, 7" % (sT0, sTt))
    g.e("s_add_u32 s%d, s%d, s%d" % (sT0, sT0, sT2))
    g.e("v_and_b32 v%d, 31, v%d" % (vT, vLane))
    g.e("v_add_u32 v%d, s%d, v%d" % (vT, sT0, vT))
    g.e("v_lshlrev_b32 v%d, 2, v%d" % (vT, vT))
    g.e("buffer_load_dword v%d, v%d, %s, 0 offen" % (vG, vT, sr(S_GT, 4)))
    g.e("buffer_load_dword v%d, v%d, %s, 0 offen offset:128" % (vG + 1, vT, sr(S_GT, 4)))

    def dma_block():
        out = []

        def pre():
            g.e("s_add_u32 m0, s%d, s%d" % (sLdsW, sW4k))
            g.e("s_cmp_lt_u32 s%d, 32" % sLU)
            g.e("s_cselect_b32 s%d, s%d, s%d" % (S_N, sCr, sCi))
            g.e("s_cselect_b32 s%d, s%d, s%d" % (S_N + 1, sCr + 1, sCi + 1))
            g.e("s_cmp_lt_u32 s%d, 64" % sLU)
            g.e("s_cselect_b32 s%d, s%d, s%d" % (S_N, S_N, sHp))
            g.e("s_cselect_b32 s%d, s%d, s%d" % (S_N + 1, S_N + 1, sHp + 1))
            g.e("s_and_b32 s%d, s%d, 0xffff" % (S_N + 1, S_N + 1))
            g.e("s_and_b32 s%d, s%d, 31" % (sKN, sLU))
            g.e("s_lshl_b32 s%d, s%d, 7" % (sKN, sKN))
            g.e("s_lshl_b32 s%d, s%d, 7" % (sKM, sLU))
        for jj in range(4):
            def f(jj=jj):
                if jj == 0:
                    pre()
                g.e("buffer_load_dwordx4 v%d, %s, s%d offen offset:%d lds" % (vLdM + jj, sr(S_M, 4), sKM, jj * 1024))
            out.append(f)
        for jj in range(4):
            def f(jj=jj):
                if jj == 0:
                    g.e("s_add_u32 s%d, s%d, s%d" % (sT0, sLdsW, sW4k))
                    g.e("s_add_u32 m0, s%d, 16384" % sT0)
                    g.e("s_nop 0")
                g.e("buffer_load_dwordx4 v%d, %s, s%d offen offset:%d lds" % (vLdN + jj, sr(S_N, 4), sKN, jj * 1024))
                if jj == 3:
                    g.e("s_add_u32 s%d, s%d, 1" % (sLU, sLU))
                    g.e("s_add_u32 s%d, s%d, 32768" % (sLdsW, sLdsW))
                    g.e("s_and_b32 s%d, s%d, 0x%x" % (sLdsW, sLdsW, NS * 32768 - 1))
            out.append(f)
        return out

    def set_addrs():
        out = []
        for j in range(4):
            out.append("v_add_u32 v%d, s%d, v%d" % (vCa + j, sLdsR, vRdA + j))
            out.append("v_add_u32 v%d, s%d, v%d" % (vCb + j, sLdsR, vRdB + j))
        return out

    def adv_r():
        return ["s_add_u32 s%d, s%d, 32768" % (sLdsR, sLdsR), "s_and_b32 s%d, s%d, 0x%x" % (sLdsR, sLdsR, NS * 32768 - 1)]

    def reads(j, fs):
        b = FR + 16 * fs
        out = []
        for bm in range(2):
            out.append("ds_read_b128 %s, v%d offset:%d" % (vr(b + 4 * bm, 4), vCa + j, bm * 4096))
        for bn in range(2):
            out.append("ds_read_b128 %s, v%d offset:%d" % (vr(b + 8 + 4 * bn, 4), vCb + j, bn * 4096))
        return out

    def mfmas(fs):
        b = FR + 16 * fs
        out = []
        for bm in range(2):
            for bn in range(2):
                out.append(lambda bm=bm, bn=bn, b=b: mfma(g, ACC + 16 * (2 * bm + bn), b + 4 * bm, b + 8 + 4 * bn))
        return out

    g.e("s_mov_b32 s%d, 0" % sLdsW)
    g.e("s_mov_b32 s%d, 0" % sLdsR)
    g.e("s_mov_b32 s%d, 0" % sI)
    for st in range(NS - 1):
        for f in dma_block():
            f()
    for i in range(64):
        g.e("v_mov_b32 v%d, 0" % (ACC + i))
    for i in range(64):
        g.e("v_mov_b32 v%d, 0" % (SAV + i))
    g.e("s_waitcnt vmcnt(%d)" % (8 * (NS - 2)))
    g.e("s_barrier")
    for t in set_addrs() + adv_r() + reads(0, 0):
        g.e(t)

    def body(with_dma, vmN, last):
        dm = dma_block() if with_dma else []
        for j in range(4):
            lastsub = (j == 3)
            g.e("s_waitcnt lgkmcnt(0)")
            if lastsub:
                if not last:
                    g.e("s_waitcnt vmcnt(%d)" % vmN)
                    g.e("s_barrier")
                    rd = set_addrs() + adv_r() + reads(0, 0)
                else:
                    rd = []
            else:
                rd = reads(j + 1, (j + 1) & 1)
            mf = mfmas(j & 1)
            others = [[] for _ in range(4)]
            if lastsub and rd:
                others[0] = rd[0:12]
                others[1] = rd[12:14]
            elif rd:
                others[0] = rd[0:2]
                others[1] = rd[2:4]
            if not lastsub and dm:
                n = 3 if j < 2 else 2
                for i in range(n):
                    others[1 + i].append(dm.pop(0))
            interleave(g, mf, others)
        assert not dm

    g.lab("K2_LOOP")
    g.e("s_cmp_eq_u32 s%d, s%d" % (sI, sN1))
    g.e("s_cbranch_scc1 K2_BND")
    g.lab("K2_BACK")
    body(True, 8 * (NS - 2), False)
    g.e("s_add_u32 s%d, s%d, 1" % (sI, sI))
    g.e("s_cmp_lt_u32 s%d, %d" % (sI, NU - (NS - 1)))
    g.e("s_cbranch_scc1 K2_LOOP")
    for k in range(NS - 1):
        rem = NS - 2 - k
        body(False, 8 * max(rem - 1, 0), k == NS - 2)
    g.e("s_branch K2_EPI")
    g.lab("K2_BND")
    g.e("s_nop 7")
    g.e("s_nop 7")
    for blk in range(4):
        for i in range(16):
            g.e("v_mul_f32 v%d, v%d, v%d" % (SAV + 16 * blk + i, ACC + 16 * blk + i, vG + (blk & 1)))
    for i in range(64):
        g.e("v_mov_b32 v%d, 0" % (ACC + i))
    g.e("s_nop 1")
    g.e("s_branch K2_BACK")
    g.lab("K2_EPI")
    g.e("s_nop 7")
    g.e("s_nop 7")
    for bn in range(2):
        g.e("v_sub_f32 v%d, 1.0, v%d" % (vG + 2 + bn, vG + bn))
    g.e("s_cmp_eq_u32 s%d, %d" % (sN1, NU))
    g.e("s_cselect_b64 vcc, -1, 0")
    g.e("s_nop 1")
    for bn in range(2):
        g.e("v_cndmask_b32 v%d, v%d, v%d, vcc" % (vG + 2 + bn, vG + 2 + bn, vG + bn))
    for blk in range(4):
        for i in range(16):
            g.e("v_fma_f32 v%d, v%d, v%d, v%d" % (ACC + 16 * blk + i, ACC + 16 * blk + i, vG + 2 + (blk & 1), SAV + 16 * blk + i))
    g.e("s_lshl_b32 s%d, s%d, 2" % (sT0, sTt))
    g.e("s_add_u32 s%d, s%d, s%d" % (sT0, sT0, sTe))
    g.e("s_lshl_b32 s%d, s%d, 6" % (sT1, sKc))
    g.e("s_add_u32 s%d, s%d, s%d" % (sT0, sT0, sT1))
    g.e("s_lshl_b32 s%d, s%d, 2" % (sT0, sT0))
    g.e("s_add_u32 s%d, s%d, s%d" % (sT0, sT0, sW))
    g.e("s_lshl_b32 s%d, s%d, 14" % (sT0, sT0))
    g.e("v_lshlrev_b32 v%d, 4, v%d" % (vT, vLane))
    g.e("v_add_u32 v%d, s%d, v%d" % (vT, sT0, vT))
    for r in range(16):
        if r % 4 == 0 and r:
            g.e("v_add_u32 v%d, 4096, v%d" % (vT, vT))
        g.e("buffer_store_dwordx4 %s, v%d, %s, 0 offen offset:%d" % (vr(ACC + 4 * r, 4), vT, sr(S_P, 4), (r % 4) * 1024))
    g.lab("K2_END")
    g.e("s_endpgm")


def gen_k3(g):
    name = "k3_kernel"
    kernel_header(g, name)
    S_P, S_O = 8, 12
    g.e("s_cmp_ge_u32 s2, 256")
    g.e("s_cbranch_scc1 K3_END")
    g.e("s_load_dwordx2 s[4:5], s[0:1], 80")
    g.e("s_load_dwordx2 s[6:7], s[0:1], 96")
    g.e("v_lshrrev_b32 v1, 6, v0")
    g.e("v_and_b32 v2, 63, v0")
    g.e("s_nop 0")
    g.e("v_readfirstlane_b32 s16, v1")
    g.e("s_waitcnt lgkmcnt(0)")
    g.srd(S_P, 6, 7, 16 << 20, WS_PART)
    g.srd(S_O, 4, 5, 2048 * 1024)
    g.e("s_lshl_b32 s17, s2, 2")
    g.e("s_add_u32 s17, s17, s16")
    g.e("s_lshl_b32 s18, s17, 12")
    g.e("v_lshlrev_b32 v3, 4, v2")
    g.e("v_add_u32 v3, s18, v3")
    for kc in range(4):
        g.e("s_mov_b32 s19, 0x%x" % (kc * (4 << 20)))
        for q in range(4):
            g.e("buffer_load_dwordx4 %s, v3, %s, s19 offen offset:%d" % (vr(16 + 16 * kc + 4 * q, 4), sr(S_P, 4), q * 1024))
    g.e("s_lshr_b32 s20, s17, 6")
    g.e("s_lshl_b32 s20, s20, 7")
    g.e("s_bfe_u32 s21, s17, 0x10002")
    g.e("s_lshl_b32 s21, s21, 6")
    g.e("s_add_u32 s20, s20, s21")
    g.e("s_and_b32 s21, s17, 1")
    g.e("s_lshl_b32 s21, s21, 5")
    g.e("s_add_u32 s20, s20, s21")
    g.e("s_bfe_u32 s21, s17, 0x20004")
    g.e("s_lshl_b32 s21, s21, 7")
    g.e("s_bfe_u32 s22, s17, 0x10003")
    g.e("s_lshl_b32 s22, s22, 6")
    g.e("s_add_u32 s21, s21, s22")
    g.e("s_bfe_u32 s22, s17, 0x10001")
    g.e("s_lshl_b32 s22, s22, 5")
    g.e("s_add_u32 s21, s21, s22")
    g.e("s_lshl_b32 s21, s21, 1")
    g.e("v_and_b32 v4, 31, v2")
    g.e("v_add_u32 v4, s20, v4")
    g.e("v_lshlrev_b32 v4, 10, v4")
    g.e("v_lshrrev_b32 v5, 5, v2")
    g.e("v_lshlrev_b32 v5, 4, v5")
    g.e("v_add3_u32 v4, v4, v5, s21")
    g.e("s_waitcnt vmcnt(0)")
    for i in range(16):
        g.e("v_add_f32 v%d, v%d, v%d" % (16 + i, 16 + i, 32 + i))
        g.e("v_add_f32 v%d, v%d, v%d" % (48 + i, 48 + i, 64 + i))
    for i in range(16):
        g.e("v_add_f32 v%d, v%d, v%d" % (16 + i, 16 + i, 48 + i))
    pack_store16(g, 16, 8, 4, S_O, 0)
    g.lab("K3_END")
    g.e("s_endpgm")


def main():
    out = sys.argv[1]
    g = Gen()
    hdr = []
    hdr.append("; @launch kernel=k1_kernel grid=(256,1,1) block=(256,1,1) lds=147456")
    hdr.append("; @launch kernel=k2_kernel grid=(256,1,1) block=(256,1,1) lds=131072")
    hdr.append("; @launch kernel=k3_kernel grid=(256,1,1) block=(256,1,1) lds=0")
    hdr.append('.amdgcn_target "amdgcn-amd-amdhsa--gfx950"')
    hdr.append(".text")
    gen_k1(g)
    g.vm = []
    gen_k2(g)
    g.vm = []
    gen_k3(g)
    tail = ['.section .rodata,"a"', kd("k1_kernel", 256), kd("k2_kernel", 256), kd("k3_kernel", 96)]
    open(out, "w").write("\n".join(hdr + g.L + tail) + "\n")


if __name__ == "__main__":
    main()
```
